```python
import torch

def _softmax(x, axis=-1):
    return torch.softmax(x, dim=axis)
def _gelu(x):
    return torch.nn.functional.gelu(x, approximate="tanh")
def _silu(x):
    return torch.nn.functional.silu(x)
def _sigmoid(x):
    return torch.sigmoid(x)
def _layernorm(x, axis=-1, eps=1e-5):
    m = x.mean(dim=axis, keepdim=True)
    v = x.var(dim=axis, keepdim=True, unbiased=False)
    return (x - m) / torch.sqrt(v + eps)
def _scatter_add(tgt, idx, src, axis=0):
    return tgt.clone().index_add_(axis, idx, src)
def _segment_sum(src, seg, n):
    out = torch.zeros((n,) + src.shape[1:], dtype=src.dtype)
    return out.index_add_(0, seg, src)
def _pad(x, pw):
    flat = tuple(v for pair in reversed(pw) for v in pair)
    return torch.nn.functional.pad(x, flat)

kernel_name = 'recurrent_scan__sliding_block_cached__dense_activation_squared_relu__decode'

def setup_inputs():

    _w = (lambda a: (lambda t: t.to(torch.bfloat16) if t.is_floating_point() else t)(torch.as_tensor(a)))
    def _A_setup():
        B, Sq, D = 1, 1, 640
        Hq, Hkv, Sk, Dh = 32, 32, 32768, 192
        assert Hq % Hkv == 0, (Hq, Hkv)
        return {
            "x": _w((lambda *s: torch.randn(*s, dtype=torch.bfloat16) * 0.05)(B, Sq, D)),
            "k_cache": _w((lambda *s: torch.randn(*s, dtype=torch.bfloat16) * 0.8)(B, Hkv, Sk, Dh)),
            "v_cache": _w((lambda *s: torch.randn(*s, dtype=torch.bfloat16) * 0.2)(B, Hkv, Sk, Dh)),
            "wq": _w((lambda *s: torch.randn(*s, dtype=torch.bfloat16) * 0.8)(D, Hq * Dh) * (D ** -0.5)),
            "wo": _w((lambda *s: torch.randn(*s, dtype=torch.bfloat16) * 0.2)(Hq * Dh, D) * ((Hq * Dh) ** -0.5)),
        }
    _A_in = _A_setup()

    def _B_setup():
        B, S, D, F = 1, 1, 640, 1536
        return {
            "x": _w((lambda *s: torch.randn(*s, dtype=torch.bfloat16) * 0.05)(B, S, D)),
            "w1": _w((lambda *s: torch.randn(*s, dtype=torch.bfloat16) * 0.1)(D, F)),
            "b1": _w((lambda *s: torch.randn(*s, dtype=torch.bfloat16) * 0.1)(F)),
            "w2": _w((lambda *s: torch.randn(*s, dtype=torch.bfloat16) * 0.1)(F, D)),
            "b2": _w((lambda *s: torch.randn(*s, dtype=torch.bfloat16) * 0.1)(D)),
        }
    _B_in = _B_setup()

    return {
        "A_x": _A_in["x"],
        "A_k_cache": _A_in["k_cache"],
        "A_v_cache": _A_in["v_cache"],
        "A_wq": _A_in["wq"],
        "A_wo": _A_in["wo"],
        "B_x": _B_in["x"],
        "B_w1": _B_in["w1"],
        "B_b1": _B_in["b1"],
        "B_w2": _B_in["w2"],
        "B_b2": _B_in["b2"],
    }

def reference(A_x, A_k_cache, A_v_cache, A_wq, A_wo, B_x, B_w1, B_b1, B_w2, B_b2):
    def _A_ref(x, k_cache, v_cache, wq, wo):
        B, Sq, D = x.shape
        Hq, Dh = 32, 192
        Hkv, Sk = k_cache.shape[1], k_cache.shape[2]
        W = min(4096, max(256, Sk // 4))
        rep = Hq // Hkv
        q = (lambda x, *d: x.permute(*d))((x @ wq).reshape(B, Sq, Hq, Dh), 0, 2, 1, 3)
        k = (lambda x, n, axis: torch.repeat_interleave(x, n, dim=axis))(k_cache[:, :, Sk - W:, :], rep, axis=1)
        v = (lambda x, n, axis: torch.repeat_interleave(x, n, dim=axis))(v_cache[:, :, Sk - W:, :], rep, axis=1)
        scores = torch.einsum("bhqd,bhkd->bhqk", q, k) * (Dh ** -0.5)
        p = _softmax(scores, axis=-1)
        o = torch.einsum("bhqk,bhkd->bhqd", p, v)
        return (lambda x, *d: x.permute(*d))(o, 0, 2, 1, 3).reshape(B, Sq, Hq * Dh) @ wo

    def _B_ref(x, w1, b1, w2, b2):
        h = torch.einsum("bsd,df->bsf", x, w1) + b1
        zero = torch.zeros_like(h)
        r = torch.where(h > zero, h, zero)
        h = r * r
        out = torch.einsum("bsf,fd->bsd", h, w2) + b2
        return out

    x = A_x
    xn = _layernorm(x, axis=-1)
    s = _A_ref(xn, A_k_cache, A_v_cache, A_wq, A_wo)
    g = _silu(_B_ref(xn, B_w1, B_b1, B_w2, B_b2))
    return x + s * g
```

```python
import re

def _regs(tok):
    tok = tok.strip()
    tok = re.sub(r'^-', '', tok)
    m = re.match(r'^abs\((.*)\)$', tok)
    if m: tok = m.group(1)
    tok = tok.strip('|')
    m = re.match(r'^([vsa])(\d+)$', tok)
    if m: return [(m.group(1), int(m.group(2)))]
    m = re.match(r'^([vsa])\[(\d+):(\d+)\]$', tok)
    if m: return [(m.group(1), i) for i in range(int(m.group(2)), int(m.group(3)) + 1)]
    if tok == 'vcc': return [('s', 106), ('s', 107)]
    if tok == 'vcc_lo': return [('s', 106)]
    if tok == 'vcc_hi': return [('s', 107)]
    if tok == 'exec': return [('s', 126), ('s', 127)]
    if tok == 'm0': return [('s', 124)]
    return []

TRANS = ('v_exp_f32', 'v_log_f32', 'v_rcp_f32', 'v_rsq_f32', 'v_sqrt_f32', 'v_sin_f32', 'v_cos_f32')

class Ins:
    def __init__(self, text):
        self.text = text
        t = text.split(';')[0].strip()
        parts = t.split(None, 1)
        self.op = parts[0]
        rest = parts[1] if len(parts) > 1 else ''
        ops = []; cur = ''; depth = 0
        for ch in rest:
            if ch == '[': depth += 1
            if ch == ']': depth -= 1
            if ch == ',' and depth == 0:
                ops.append(cur); cur = ''
            else: cur += ch
        ops.append(cur)
        toks = []
        self.mods = ''
        for i, o in enumerate(ops):
            o = o.strip()
            if i == len(ops) - 1:
                sp = o.split(None, 1)
                if sp:
                    toks.append(sp[0])
                    self.mods = sp[1] if len(sp) > 1 else ''
            else: toks.append(o)
        self.toks = toks
        op = self.op
        self.kind = 'other'
        self.w = []; self.r = []
        self.srcC = []; self.srcAB = []
        self.states = 1
        R = [_regs(x) for x in toks]
        if op == 's_nop':
            self.kind = 'nop'; self.states = int(toks[0], 0) + 1
        elif op.startswith('v_mfma'):
            self.kind = 'mfma'; self.w = R[0]; self.srcAB = R[1] + R[2]; self.srcC = R[3]; self.r = self.srcAB + self.srcC
        elif op.startswith('v_'):
            self.kind = 'valu'
            base = op.replace('_e32', '').replace('_e64', '').replace('_dpp', '')
            self.base = base
            if base.startswith('v_cmp'):
                self.w = R[0]; self.r = sum(R[1:], [])
            elif base in ('v_readfirstlane_b32', 'v_readlane_b32'):
                self.w = R[0]; self.r = sum(R[1:], []); self.readlane = True
            elif base.startswith('v_permlane'):
                self.w = R[0] + R[1]; self.r = R[0] + R[1]
            elif base in ('v_add_co_u32', 'v_sub_co_u32', 'v_addc_co_u32'):
                self.w = R[0] + R[1]; self.r = sum(R[2:], [])
            else:
                self.w = R[0]; self.r = sum(R[1:], [])
                if base in ('v_fmac_f32', 'v_dot2c_f32_bf16') or 'dpp' in op or 'row_' in self.mods or 'quad_perm' in self.mods:
                    self.r = self.r + R[0]
            self.dpp = ('_dpp' in op) or ('quad_perm' in self.mods) or ('row_' in self.mods)
            self.trans = base in TRANS
            self.dot = base.startswith('v_dot')
            self.perm = base.startswith('v_permlane')
        elif op.startswith('buffer_') or op.startswith('global_'):
            self.kind = 'vmem'
            if 'load' in op and 'lds' not in self.mods.split():
                self.w = R[0]; self.r = sum(R[1:], [])
            else:
                self.r = sum(R, [])
                self.store_data = R[0] if op.startswith('buffer_') else (R[1] if len(R) > 1 else [])
                self.wide = ('x3' in op or 'x4' in op)
        elif op.startswith('ds_'):
            self.kind = 'ds'
            if 'read' in op or 'rtn' in op or 'permute' in op or 'swizzle' in op:
                self.w = R[0]; self.r = sum(R[1:], [])
            else:
                self.r = sum(R, [])
        elif op.startswith('s_'):
            self.kind = 'salu'
            if op.startswith('s_cmp') or op.startswith('s_cbranch') or op in ('s_branch', 's_waitcnt', 's_barrier', 's_sleep', 's_setprio', 's_endpgm'):
                self.r = sum(R, [])
            else:
                self.w = R[0] if R else []; self.r = sum(R[1:], [])

def need(p, c):
    n = 0
    pw = set(p.w); cr = set(c.r); cw = set(c.w)
    pwv = {x for x in pw if x[0] in 'va'}; pws = {x for x in pw if x[0] == 's'}
    if p.kind == 'valu':
        if c.kind == 'valu':
            if c.dpp and pwv & cr: n = max(n, 2)
            if c.perm and pwv & (cr | cw): n = max(n, 2)
            if p.trans and not c.trans and pwv & cr: n = max(n, 1)
            if p.trans and c.trans and pwv & cr: n = max(n, 1)
            if getattr(c, 'readlane', False) and pwv & cr: n = max(n, 1)
            if pws & cr: n = max(n, 4 if getattr(c, 'readlane', False) else 2)
            if 'cndmask' in c.op and ('s', 106) in pws: n = max(n, 2)
            if p.dot and pwv & (cr | cw):
                if c.dot and c.base == p.base:
                    ab = set(sum([_regs(x) for x in c.toks[1:3]], []))
                    if pwv & ab: n = max(n, 3)
                else: n = max(n, 3)
        if c.kind == 'mfma' and pwv & cr: n = max(n, 3 if p.dot else 2)
        if c.kind in ('vmem', 'ds'):
            if pws & cr: n = max(n, 5)
            if p.dot and pwv & (cr | cw): n = max(n, 3)
            if p.trans and pwv & cr: n = max(n, 1)
        if c.kind == 'salu' and pws & cr: n = max(n, 1)
    if p.kind == 'mfma':
        passes = 4 if '16x16x32' in p.op else 8
        big = {4: 8, 8: 12}[passes]; ovl = {4: 6, 8: 10}[passes]; war = {4: 3, 8: 7}[passes]
        if c.kind == 'mfma':
            if pwv & set(c.srcAB): n = max(n, big)
            if pwv & set(c.srcC):
                if list(p.w) != list(c.srcC): n = max(n, ovl)
            elif pwv & cw: n = max(n, ovl)
        elif c.kind in ('valu', 'vmem', 'ds'):
            if pwv & (cr | cw): n = max(n, big)
            if c.kind == 'valu' and set(p.srcC) & cw: n = max(n, war)
    if p.kind == 'vmem' and getattr(p, 'wide', False):
        if set(p.store_data) & cw: n = max(n, 2)
    if p.kind == 'salu' and ('s', 124) in pw and c.kind == 'vmem' and 'lds' in c.mods.split(): n = max(n, 1)
    return n

class Asm:
    def __init__(self):
        self.out = []
        self.hist = []
        self.nnop = 0
    def raw(self, s): self.out.append(s)
    def _pad(self, k):
        while k > 0:
            n = min(k, 16)
            i = Ins(f"s_nop {n-1}"); self.out.append("    " + i.text + "  ; hazard pad"); self.hist.append(i); k -= n; self.nnop += 1
    def __call__(self, text):
        for line in text.strip().split('\n'):
            line = line.strip()
            if not line: continue
            if line.endswith(':'):
                self.label(line[:-1]); continue
            if line.startswith(';'):
                self.out.append("    " + line); continue
            c = Ins(line)
            dist = 0; k = 0
            for p in reversed(self.hist[-24:]):
                nd = need(p, c)
                if nd > dist: k = max(k, nd - dist)
                dist += p.states
                if dist > 20: break
            self._pad(k)
            if c.op.startswith('s_cbranch') or c.op == 's_branch':
                self.flush(1)
            self.out.append("    " + line); self.hist.append(c)
    def flush(self, credit=0):
        dist = credit; k = 0
        for p in reversed(self.hist[-24:]):
            worst = 0
            if p.kind == 'mfma': worst = 8 if '16x16x32' in p.op else 12
            elif p.kind == 'valu':
                worst = 2
                if p.dot: worst = 3
                if any(x[0] == 's' for x in p.w): worst = 5 if not p.op.startswith('v_cmp') else 2
            elif p.kind == 'vmem' and getattr(p, 'wide', False): worst = 2
            if worst > dist: k = max(k, worst - dist)
            dist += p.states
            if dist > 20: break
        self._pad(k)
    def label(self, name):
        self.flush()
        self.out.append(name + ":")
    def text(self): return "\n".join(self.out) + "\n"
```

```python
import sys, struct
from asmlib import Asm
NAME = "recurrent_scan__sliding_block_cached__dense_activation_squared_relu__decode"

def f2u(x): return struct.unpack('<I', struct.pack('<f', x))[0]

REC = 4736
O_OFF, ML_OFF, SP_OFF, F2_OFF, F1_OFF, QP_OFF = 0, 1536, 1664, 2176, 2688, 3200
EP_OFF = 256 * REC
WS_BYTES = 256 * REC + 128
STAMP_OFF = 2 << 20
L_PART, PSTR = 0, 832
L_Q = 6656
L_CTRL = 7040
L_SP, SSTR = 7168, 320
LDS_BYTES = 9728
TIMEOUT = 200000
TAG = 76

HEADER = open("cdna_kernels/" + NAME + ".s.ref").read().split("; Override launch")[0]

def gen(stamps=False, nt="nt", opts=None):
    opts = opts or {}
    prioA = opts.get("prioA", 2); prioB = opts.get("prioB", 1)
    a = Asm()
    def stamp(i):
        if stamps or opts.get("dbgstamps"): a(f"s_memrealtime s[{80+2*i}:{81+2*i}]")
    a.raw(HEADER.rstrip())
    a.raw(f"; @launch grid=(256,1,1) block=(512,1,1) lds={LDS_BYTES}")
    a.raw('.amdgcn_target "amdgcn-amd-amdhsa--gfx950"')
    a.raw(".text"); a.raw(f".globl {NAME}_kernel"); a.raw(".p2align 8"); a.raw(f".type {NAME}_kernel,@function")
    a.raw(f"{NAME}_kernel:")

    def srd(d, lo, hi, off, nbytes):
        if off is None:
            a(f"s_mov_b32 s{d}, s{lo}\ns_mov_b32 s{d+1}, s{hi}")
        else:
            a(f"s_add_u32 s{d}, s{lo}, {off}\ns_addc_u32 s{d+1}, s{hi}, 0")
        a(f"s_mov_b32 s{d+2}, {nbytes}\ns_mov_b32 s{d+3}, 0x20000")
    def bfly8(op, regs):
        for mod in ("quad_perm:[1,0,3,2]", "quad_perm:[2,3,0,1]", "row_half_mirror"):
            for r in regs:
                a(f"{op}_dpp v{r}, v{r}, v{r} {mod} row_mask:0xf bank_mask:0xf")
    def allred_hi(op, r, t):
        a(f"{op}_dpp v{r}, v{r}, v{r} row_ror:8 row_mask:0xf bank_mask:0xf")
        a(f"v_mov_b32 v{t}, v{r}")
        a(f"v_permlane16_swap_b32 v{r}, v{t}")
        a(f"{op} v{r}, v{r}, v{t}")
        a(f"v_mov_b32 v{t}, v{r}")
        a(f"v_permlane32_swap_b32 v{r}, v{t}")
        a(f"{op} v{r}, v{r}, v{t}")
    def rne(d, s):
        a(f"v_cvt_pk_bf16_f32 v{d}, v{s}, v{s}")
        a(f"v_and_b32 v{d}, 0xffff0000, v{d}")
    def mkA(dst, val, tmp):
        a(f"v_cvt_pk_bf16_f32 v{tmp}, v{val}, v{val}")
        for t in range(4):
            a(f"v_and_b32 v{dst+t}, v{tmp}, v{8+t}")
    def evenodd(res, d):
        a(f"v_permlane32_swap_b32 v{d}, v{d+1}")
        a(f"v_permlane32_swap_b32 v{d+2}, v{d+3}")
        a(f"v_add_f32_dpp v{res}, v{d+1}, v{d} row_ror:8 row_mask:0xf bank_mask:0x3")
        a(f"v_add_f32_dpp v{res}, v{d+2}, v{d+3} row_ror:8 row_mask:0xf bank_mask:0xc")
    def tagcheck(tagregs, tmp):
        outs = []
        i = 0; k = 0
        while i < len(tagregs):
            if i + 1 < len(tagregs):
                a(f"v_bitop3_b32 v{tmp+k}, v{tagregs[i]}, v{tagregs[i+1]}, s{TAG} bitop3:0x7e")
            else:
                a(f"v_xor_b32 v{tmp+k}, s{TAG}, v{tagregs[i]}")
            outs.append(tmp + k); k += 1; i += 2
        while len(outs) > 1:
            if len(outs) >= 3:
                a(f"v_or3_b32 v{outs[0]}, v{outs[0]}, v{outs[1]}, v{outs[2]}"); outs = [outs[0]] + outs[3:]
            else:
                a(f"v_or_b32 v{outs[0]}, v{outs[0]}, v{outs[1]}"); outs = [outs[0]]
        a(f"v_cmp_ne_u32 vcc, 0, v{outs[0]}")
    def poll(lbl, loads, tagregs, tmp, sleep=0):
        early = lbl in ("L_qpoll", "L_f1poll", "L_f2poll")
        a(f"s_mov_b32 s71, {opts.get('timeout', TIMEOUT) if early else TIMEOUT}")
        a(f"{lbl}:")
        if not (early and opts.get("nopoll")): loads()
        a("s_waitcnt vmcnt(0)")
        tagcheck(tagregs, tmp)
        a(f"s_cbranch_vccz {lbl}_d")
        if sleep: a(f"s_sleep {sleep}")
        a("s_sub_u32 s71, s71, 1")
        a(f"s_cbranch_scc0 {lbl}")
        a(f"{lbl}_d:")

    a("s_cmp_ge_u32 s2, 256\ns_cbranch_scc1 L_end")
    a("s_load_dwordx16 s[4:19], s[0:1], 0")
    a("s_load_dwordx8 s[20:27], s[0:1], 64")
    a("s_load_dwordx2 s[28:29], s[0:1], 96")
    stamp(0)
    a("""
    v_and_b32 v1, 63, v0
    v_lshrrev_b32 v7, 6, v0
    v_lshrrev_b32 v2, 3, v1
    v_and_b32 v3, 7, v1
    v_readfirstlane_b32 s3, v7
    v_mul_u32_u24 v4, 384, v2
    v_lshl_add_u32 v4, v3, 4, v4
    v_mov_b32 v16, 0
    v_mov_b32 v17, 0
    v_mov_b32 v18, 0
    v_mov_b32 v19, 0
    """)
    a(f"v_mov_b32 v14, {L_CTRL}")
    a("ds_write_b128 v14, v[16:19]")
    a("""
    s_and_b32 s30, s2, 31
    s_lshr_b32 s31, s2, 5
    s_mul_i32 s67, s30, 12582912
    s_mul_i32 s68, s31, 196608
    s_add_u32 s67, s67, s68
    s_mul_i32 s68, s3, 24576
    s_add_u32 s67, s67, s68
    """)
    a(f"s_add_u32 s67, s67, {28672*384}")
    a("""
    s_mul_i32 s64, s2, 205
    s_lshr_b32 s64, s64, 11
    s_mul_i32 s65, s64, 10
    s_sub_u32 s65, s2, s65
    """)
    a(f"s_mul_i32 s66, s2, {REC}")
    a("""
    v_and_b32 v12, 1, v3
    v_lshlrev_b32 v12, 4, v12
    v_mov_b32 v13, 0xffff
    v_lshlrev_b32 v12, v12, v13
    v_lshrrev_b32 v13, 1, v3
    """)
    for t in range(4):
        a(f"v_cmp_eq_u32 vcc, {t}, v13")
        a(f"v_cndmask_b32 v{8+t}, 0, v12, vcc")
    a("""
    v_lshlrev_b32 v5, 5, v3
    v_bfe_u32 v12, v1, 4, 1
    v_lshl_add_u32 v5, v12, 4, v5
    v_bfe_u32 v12, v1, 3, 1
    v_lshl_add_u32 v5, v12, 3, v5
    v_bfe_u32 v12, v1, 5, 1
    v_lshl_add_u32 v5, v12, 2, v5
    v_lshlrev_b32 v15, 1, v5
    """)
    a("v_mul_u32_u24 v6, 5120, v2\nv_lshl_add_u32 v6, v3, 4, v6")
    a("""
    s_lshl_b32 s68, s64, 3
    s_add_u32 s68, s68, s3
    s_mul_i32 s69, s68, 40960
    s_lshl_b32 s70, s65, 7
    s_add_u32 s69, s69, s70
    s_cmp_lt_u32 s2, 240
    s_cselect_b32 s69, s69, 0
    """)
    a("s_waitcnt lgkmcnt(0)")
    a(f"s_add_u32 s72, s28, {EP_OFF}\ns_addc_u32 s73, s29, 0")
    a(f"s_load_dword s{TAG}, s[72:73], 0")
    srd(32, 6, 7, "s67", 24576)
    srd(36, 8, 9, "s67", 24576)
    srd(48, 28, 29, None, WS_BYTES)
    srd(44, 4, 5, None, 1280)
    srd(56, 12, 13, "s69", 0)
    a("s_barrier")
    a("s_cmp_lt_u32 s3, 4\ns_cbranch_scc0 L_phaseA")
    a(f"s_setprio {prioA}")
    a("s_branch L_bulk")

    a("L_phaseA:")
    a("s_setprio 3")
    a("v_lshlrev_b32 v12, 2, v1")
    for k in range(5):
        a(f"buffer_load_dword v{52+k}, v12, s[44:47], 0 offen offset:{256*k}")
    a("s_cmp_eq_u32 s3, 7\ns_cbranch_scc1 L_w1")

    def layernorm_stats():
        for k in range(5):
            a(f"v_lshlrev_b32 v{200+2*k}, 16, v{52+k}")
            a(f"v_and_b32 v{201+2*k}, 0xffff0000, v{52+k}")
        a("v_add_f32 v57, v200, v201")
        for k in range(2, 10): a(f"v_add_f32 v57, v57, v{200+k}")
        bfly8("v_add_f32", [57]); allred_hi("v_add_f32", 57, 58)
        a(f"v_mul_f32 v57, {hex(f2u(1.0/640))}, v57")
        for k in range(10): a(f"v_sub_f32 v{200+k}, v{200+k}, v57")
        a("v_mul_f32 v58, v200, v200")
        for k in range(1, 10): a(f"v_fmac_f32 v58, v{200+k}, v{200+k}")
        bfly8("v_add_f32", [58]); allred_hi("v_add_f32", 58, 59)
        a(f"v_mul_f32 v58, {hex(f2u(1.0/640))}, v58")
        rne(57, 57)
        rne(58, 58)
        a(f"v_add_f32 v58, {hex(f2u(1e-5))}, v58")
        rne(58, 58)
        a("v_sqrt_f32 v58, v58")
        rne(58, 58)
        a("v_rcp_f32 v59, v58")
    def xn_to_A(nG, xr):
        for G in range(nG):
            if G % 2 == 0: a(f"v_lshlrev_b32 v60, 16, v{xr+G//2}")
            else: a(f"v_and_b32 v60, 0xffff0000, v{xr+G//2}")
            a("v_sub_f32 v60, v60, v57")
            rne(60, 60)
            a("v_mul_f32 v61, v60, v59")
            a("v_fma_f32 v62, -v61, v58, v60")
            a("v_fma_f32 v61, v62, v59, v61")
            mkA(160 + 4*G, 61, 62)
    def gemv_chain(nG, wbase, extra_after):
        for r in range(4): a(f"v_mov_b32 v{44+r}, 0")
        for G in range(nG):
            a(f"s_waitcnt vmcnt({nG-1-G+extra_after})")
            a(f"v_mfma_f32_16x16x32_bf16 v[44:47], v[{160+4*G}:{163+4*G}], v[{wbase+4*G}:{wbase+3+4*G}], v[44:47]")
        evenodd(48, 44)
    def mktag():
        a("s_waitcnt lgkmcnt(0)")
        a(f"s_add_u32 s{TAG}, s{TAG}, 0x9e3779b9")

    a("""
    s_mul_i32 s68, s31, 160
    v_mul_u32_u24 v12, 20, v2
    """)
    a("buffer_load_dwordx4 v[16:19], v12, s[44:47], s68 offen")
    a("buffer_load_dword v20, v12, s[44:47], s68 offen offset:16")
    a(f"""
    s_mul_i32 s68, s31, {80*12288}
    s_mul_i32 s69, s30, 384
    s_add_u32 s68, s68, s69
    s_sub_u32 s69, s3, 4
    s_lshl_b32 s69, s69, 7
    s_add_u32 s68, s68, s69
    """)
    srd(40, 10, 11, "s68", 79 * 12288 + 128)
    a(f"v_mul_u32_u24 v13, {10*12288}, v2\nv_lshl_add_u32 v13, v3, 4, v13")
    a("s_mov_b32 s70, 0")
    for G in range(10):
        a(f"buffer_load_dwordx4 v[{64+4*G}:{67+4*G}], v13, s[40:43], s70 offen {nt}")
        if G < 9: a("s_add_u32 s70, s70, 12288")
    a("s_waitcnt vmcnt(10)")
    mktag()
    stamp(1)
    layernorm_stats()
    xn_to_A(10, 16)
    a(f"v_mov_b32 v49, s{TAG}")
    a(f"s_sub_u32 s69, s3, 4\ns_lshl_b32 s69, s69, 9\ns_add_u32 s69, s69, s66\ns_add_u32 s69, s69, {QP_OFF}")
    gemv_chain(10, 64, 0)
    if not opts.get("nopub"): a("buffer_store_dwordx2 v[48:49], v15, s[48:51], s69 offen sc1")
    a("s_branch L_pubdone")

    a("L_w1:")
    a("s_cmp_lt_u32 s2, 240\ns_cbranch_scc1 L_w1b")
    mktag()
    a("s_branch L_pubdone")
    a("L_w1b:")
    a("s_lshl_b32 s68, s65, 7\nv_lshlrev_b32 v12, 4, v2")
    a("buffer_load_dwordx4 v[16:19], v12, s[44:47], s68 offen")
    a(f"s_mul_i32 s68, s65, {64*3072}\ns_lshl_b32 s69, s64, 7\ns_add_u32 s68, s68, s69")
    srd(40, 16, 17, "s68", 63 * 3072 + 128)
    a(f"v_mul_u32_u24 v13, {8*3072}, v2\nv_lshl_add_u32 v13, v3, 4, v13")
    a("s_mov_b32 s70, 0")
    for G in range(8):
        a(f"buffer_load_dwordx4 v[{64+4*G}:{67+4*G}], v13, s[40:43], s70 offen {nt}")
        if G < 7: a("s_add_u32 s70, s70, 3072")
    a("s_waitcnt vmcnt(8)")
    mktag()
    stamp(1)
    layernorm_stats()
    xn_to_A(8, 16)
    a(f"v_mov_b32 v49, s{TAG}")
    a(f"s_add_u32 s69, s66, {F1_OFF}")
    gemv_chain(8, 64, 0)
    if not opts.get("nopub"): a("buffer_store_dwordx2 v[48:49], v15, s[48:51], s69 offen sc1")

    a("L_pubdone:")
    stamp(2)
    a(f"s_setprio {prioB}")
    a(f"s_cmp_lt_u32 s2, 240\ns_cselect_b32 s58, {31*1280+128}, 0")

    a("L_bulk:")
    for (srdn, base) in ((32, 64), (36, 160)):
        a("s_mov_b32 s70, 0")
        for G in range(8):
            for i in range(3):
                r = base + 12*G + 4*i
                a(f"buffer_load_dwordx4 v[{r}:{r+3}], v4, s[{srdn}:{srdn+3}], s70 offen offset:{128*i} {nt}")
            if G < 7: a("s_add_u32 s70, s70, 3072")
    for i in range(4):
        a(f"buffer_load_dwordx4 v[{16+4*i}:{19+4*i}], v6, s[56:59], 0 offen offset:{1280*i} {nt}")
    stamp(3)
    a("s_cmp_lt_u32 s3, 4\ns_cbranch_scc0 L_qw0")
    mktag()
    a("s_cmp_lt_u32 s3, 3\ns_cbranch_scc0 L_qw0")
    a("s_setprio 3")
    a(f"v_mul_u32_u24 v12, {32*REC}, v3\nv_lshl_add_u32 v12, v2, 6, v12")
    a(f"s_mul_i32 s68, s30, {REC}\ns_lshl_b32 s69, s3, 9\ns_add_u32 s68, s68, s69\ns_add_u32 s68, s68, {QP_OFF}")
    def qloads():
        for k in range(4):
            a(f"buffer_load_dwordx4 v[{16+4*k}:{19+4*k}], v12, s[48:51], s68 offen offset:{16*k} sc1")
    poll("L_qpoll", qloads, list(range(17, 32, 2)), 32, sleep=8)
    bfly8("v_add_f32", list(range(16, 32, 2)))
    for k in range(4): a(f"v_cvt_pk_bf16_f32 v{32+k}, v{16+4*k}, v{18+4*k}")
    a("s_lshl_b32 s69, s3, 7")
    a("v_lshl_add_u32 v12, v2, 4, s69")
    a("s_mov_b32 exec_lo, 0x01010101\ns_mov_b32 exec_hi, 0x01010101")
    a(f"ds_write_b128 v12, v[32:35] offset:{L_Q}")
    a("s_lshl_b32 s69, s3, 2")
    a("v_add_u32 v12, s69, v14")
    a("v_mov_b32 v13, 1")
    a("s_waitcnt lgkmcnt(0)")
    a("ds_write_b32 v12, v13")
    a("s_mov_b64 exec, -1")
    a(f"s_setprio {prioA}")
    stamp(2)
    a("L_qw0:")
    a(f"s_mov_b32 s71, {TIMEOUT}")
    a("L_qwait:")
    a("ds_read_b96 v[32:34], v14")
    a("s_waitcnt lgkmcnt(0)")
    a("v_and_b32 v32, v32, v33\nv_and_b32 v32, v32, v34")
    a("v_readfirstlane_b32 s68, v32")
    a("s_cmp_lg_u32 s68, 0\ns_cbranch_scc1 L_qwait_done")
    a("s_sleep 2")
    a("s_sub_u32 s71, s71, 1")
    a("s_cbranch_scc0 L_qwait")
    a("L_qwait_done:")
    a("v_lshlrev_b32 v12, 4, v3")
    for i in range(3):
        a(f"ds_read_b128 v[{32+4*i}:{35+4*i}], v12 offset:{L_Q+128*i}")
    for G in range(8): a(f"v_mov_b32 v{44+G}, 0")
    a("s_waitcnt vmcnt(28) lgkmcnt(0)")
    stamp(4)
    for k in range(12):
        for G in range(8):
            a(f"v_dot2c_f32_bf16 v{44+G}, v{64+12*G+k}, v{32+k}")
    bfly8("v_add_f32", list(range(44, 52)))
    a(f"s_mov_b32 s72, {hex(f2u(192 ** -0.5))}")
    a(f"s_mov_b32 s73, {hex(f2u(1.4426950408889634))}")
    for G in range(0, 8, 2): a(f"v_cvt_pk_bf16_f32 v{52+G//2}, v{44+G}, v{45+G}")
    for G in range(0, 8, 2):
        a(f"v_lshlrev_b32 v{44+G}, 16, v{52+G//2}")
        a(f"v_and_b32 v{45+G}, 0xffff0000, v{52+G//2}")
    for G in range(8): a(f"v_mul_f32 v{44+G}, s72, v{44+G}")
    for G in range(0, 8, 2): a(f"v_cvt_pk_bf16_f32 v{52+G//2}, v{44+G}, v{45+G}")
    for G in range(0, 8, 2):
        a(f"v_lshlrev_b32 v{44+G}, 16, v{52+G//2}")
        a(f"v_and_b32 v{45+G}, 0xffff0000, v{52+G//2}")
    for G in range(8): a(f"v_mul_f32 v{44+G}, s73, v{44+G}")
    a("""
    v_max3_f32 v52, v44, v45, v46
    v_max3_f32 v53, v47, v48, v49
    v_max3_f32 v52, v52, v50, v51
    v_max_f32 v52, v52, v53
    """)
    allred_hi("v_max_f32", 52, 53)
    for G in range(8): a(f"v_sub_f32 v{44+G}, v{44+G}, v52")
    for G in range(8): a(f"v_exp_f32 v{44+G}, v{44+G}")
    for G in range(8): mkA(64 + 4*G, 44 + G, 54 + (G % 2))
    a("v_add_f32 v53, v44, v45")
    for G in range(2, 8): a(f"v_add_f32 v53, v53, v{44+G}")
    allred_hi("v_add_f32", 53, 54)
    for r in range(12): a(f"v_mov_b32 v{32+r}, 0")
    a(f"s_mul_i32 s68, s3, {PSTR}")
    a("v_add_u32 v12, s68, v5")
    a("v_mov_b32 v13, s68")
    a(f"ds_write_b64 v13, v[52:53] offset:{L_PART+768}")
    stamp(5)
    for G in range(8):
        for i in range(3):
            n = 4 + 23 - (3*G + i)
            a(f"s_waitcnt vmcnt({n})")
            r = 160 + 12*G + 4*i
            a(f"v_mfma_f32_16x16x32_bf16 v[{32+4*i}:{35+4*i}], v[{64+4*G}:{67+4*G}], v[{r}:{r+3}], v[{32+4*i}:{35+4*i}]")
    stamp(6)
    for i in range(3):
        evenodd(44 + i, 32 + 4*i)
        a(f"ds_write_b32 v12, v{44+i} offset:{L_PART+256*i}")
    a("s_cmp_lt_u32 s3, 4\ns_cbranch_scc0 L_T1")

    a("s_cmp_lt_u32 s2, 240\ns_cbranch_scc0 L_nonconsumer")
    a("s_cmp_eq_u32 s3, 3\ns_cbranch_scc0 L_awo")
    a(f"s_mul_i32 s68, s64, {64*1280}\ns_lshl_b32 s69, s65, 7\ns_add_u32 s68, s68, s69")
    srd(40, 20, 21, "s68", 63 * 1280 + 128)
    a(f"v_mul_u32_u24 v13, {8*1280}, v2\nv_lshl_add_u32 v13, v3, 4, v13")
    a("s_mov_b32 s70, 0")
    for G in range(8):
        a(f"buffer_load_dwordx4 v[{64+4*G}:{67+4*G}], v13, s[40:43], s70 offen {nt}")
        if G < 7: a("s_add_u32 s70, s70, 1280")
    srd(60, 18, 19, None, 3072)
    a("s_lshl_b32 s68, s64, 7\nv_lshlrev_b32 v12, 4, v2")
    a("buffer_load_dwordx4 v[16:19], v12, s[60:63], s68 offen")
    a(f"v_mul_u32_u24 v12, {REC}, v3\nv_lshl_add_u32 v12, v2, 6, v12")
    a(f"v_and_b32 v13, 1, v3\nv_add_u32 v13, 8, v13\nv_mul_u32_u24 v13, {REC}, v13\nv_lshl_add_u32 v13, v2, 6, v13")
    a(f"s_mul_i32 s68, s64, {10*REC}\ns_add_u32 s68, s68, {F1_OFF}")
    def f1loads():
        for k in range(4):
            a(f"buffer_load_dwordx4 v[{96+4*k}:{99+4*k}], v12, s[48:51], s68 offen offset:{16*k} sc1")
        for k in range(4):
            a(f"buffer_load_dwordx4 v[{112+4*k}:{115+4*k}], v13, s[48:51], s68 offen offset:{16*k} sc1")
    poll("L_f1poll", f1loads, list(range(97, 128, 2)), 128, sleep=8)
    a("v_cmp_gt_u32 vcc, 2, v3")
    for G in range(8): a(f"v_cndmask_b32 v{112+2*G}, 0, v{112+2*G}, vcc")
    for G in range(8): a(f"v_add_f32 v{96+2*G}, v{96+2*G}, v{112+2*G}")
    bfly8("v_add_f32", list(range(96, 112, 2)))
    for G in range(8):
        x = 96 + 2*G
        rne(x, x)
        if G % 2 == 0: a(f"v_lshlrev_b32 v60, 16, v{16+G//2}")
        else: a(f"v_and_b32 v60, 0xffff0000, v{16+G//2}")
        a(f"v_add_f32 v{x}, v{x}, v60")
        rne(x, x)
        a(f"v_max_f32 v{x}, 0, v{x}")
        a(f"v_mul_f32 v{x}, v{x}, v{x}")
        mkA(160 + 4*G, x, 62)
    a(f"v_mov_b32 v49, s{TAG}")
    a(f"s_add_u32 s69, s66, {F2_OFF}")
    gemv_chain(8, 64, 0)
    if not opts.get("nopub"): a("buffer_store_dwordx2 v[48:49], v15, s[48:51], s69 offen sc1")
    a("L_awo:")
    a("s_setprio 0")
    a(f"s_mov_b32 s58, {31*1280+128}")
    for i in range(4):
        a(f"buffer_load_dwordx4 v[{16+4*i}:{19+4*i}], v6, s[56:59], 0 offen offset:{1280*i} {nt}")
    a(f"s_setprio {prioA}")
    a("s_branch L_T1")

    def reduce24(off, res, lbl, sleep=0):
        def loads():
            for t in range(3):
                a(f"buffer_load_dwordx4 v[{64+4*t}:{67+4*t}], v21, s[48:51], s{77+t} offen offset:{off} sc1")
        poll(lbl, loads, [65, 67, 69, 71, 73, 75], 76, sleep=sleep)
        a("v_add_f32 v64, v64, v68\nv_add_f32 v66, v66, v70\nv_add_f32 v64, v64, v72\nv_add_f32 v66, v66, v74")
        a("v_permlane32_swap_b32 v64, v66")
        a("v_add_f32 v64, v64, v66")
        a("v_add_f32_dpp v64, v64, v64 row_ror:8 row_mask:0xf bank_mask:0xf")
        a("v_mov_b32 v66, v64")
        a("v_permlane16_swap_b32 v64, v66")
        a(f"v_add_f32 v{res}, v64, v66")

    a("L_nonconsumer:")
    a("s_cmp_lt_u32 s2, 250\ns_cbranch_scc0 L_T1")
    a("s_sub_u32 s75, s2, 240")
    a(f"s_mul_i32 s77, s75, {REC}\ns_lshl_b32 s68, s3, 7\ns_add_u32 s77, s77, s68")
    a(f"s_add_u32 s78, s77, {80*REC}\ns_add_u32 s79, s77, {160*REC}")
    a(f"v_mul_u32_u24 v21, {10*REC}, v2\nv_lshl_add_u32 v21, v3, 4, v21")
    a("""
    v_lshlrev_b32 v22, 2, v3
    v_bfe_u32 v13, v1, 5, 1
    v_lshl_add_u32 v22, v13, 1, v22
    s_lshl_b32 s68, s75, 7
    s_lshl_b32 s69, s3, 5
    s_add_u32 s68, s68, s69
    v_add_u32 v22, s68, v22
    """)
    srd(60, 22, 23, None, 1280)
    a("buffer_load_ushort v24, v22, s[60:63], 0 offen")
    a("buffer_load_ushort v25, v22, s[44:47], 0 offen")
    reduce24(F2_OFF, 26, "L_f2poll", sleep=16)
    rne(26, 26)
    a("v_lshlrev_b32 v24, 16, v24\nv_lshlrev_b32 v25, 16, v25")
    a("v_add_f32 v26, v26, v24")
    rne(26, 26)
    a(f"v_mul_f32 v27, {hex(f2u(-1.4426950408889634))}, v26")
    a("v_exp_f32 v27, v27")
    a("v_add_f32 v27, 1.0, v27")
    a("v_rcp_f32 v27, v27")
    a("v_mul_f32 v26, v26, v27")
    rne(26, 26)

    a("L_T1:")
    a(f"v_mul_u32_u24 v12, {PSTR}, v3")
    a("s_lshl_b32 s68, s3, 7")
    a("v_lshl_add_u32 v13, v2, 4, s68")
    a("v_add_u32 v56, v12, v13")
    a("v_lshlrev_b32 v13, 1, v13\nv_lshl_add_u32 v13, v3, 4, v13")
    a(f"v_mov_b32 v49, s{TAG}\nv_mov_b32 v51, s{TAG}\nv_mov_b32 v59, s{TAG}\nv_mov_b32 v61, s{TAG}")
    a("v_cmp_eq_u32 s[74:75], 1, v3")
    a("s_waitcnt lgkmcnt(0)")
    a("s_barrier")
    stamp(7)
    a("s_cmp_lt_u32 s3, 6\ns_cbranch_scc0 L_combined")
    a(f"ds_read_b64 v[52:53], v12 offset:{L_PART+768}")
    a(f"ds_read_b128 v[44:47], v56 offset:{L_PART}")
    a("s_waitcnt lgkmcnt(1)")
    a("v_max_f32_dpp v58, v52, v52 quad_perm:[1,0,3,2] row_mask:0xf bank_mask:0xf")
    a("v_max_f32_dpp v58, v58, v58 quad_perm:[2,3,0,1] row_mask:0xf bank_mask:0xf")
    a("v_max_f32_dpp v58, v58, v58 row_half_mirror row_mask:0xf bank_mask:0xf")
    a("v_sub_f32 v52, v52, v58")
    a("v_exp_f32 v52, v52")
    a("s_waitcnt lgkmcnt(0)")
    for r in range(4): a(f"v_mul_f32 v{44+r}, v52, v{44+r}")
    a("v_mul_f32 v60, v52, v53")
    bfly8("v_add_f32", [44, 45, 46, 47, 60])
    a("v_cndmask_b32 v48, v44, v46, s[74:75]")
    a("v_cndmask_b32 v50, v45, v47, s[74:75]")
    a("s_mov_b32 exec_lo, 0x03030303\ns_mov_b32 exec_hi, 0x03030303")
    a("buffer_store_dwordx4 v[48:51], v13, s[48:51], s66 offen sc1")
    a("s_cmp_eq_u32 s3, 0\ns_cbranch_scc0 L_noml")
    a("s_mov_b64 exec, 1")
    a(f"buffer_store_dwordx4 v[58:61], v13, s[48:51], s66 offen offset:{ML_OFF} sc1")
    a("L_noml:")
    a("s_mov_b64 exec, -1")
    a("L_combined:")
    a("s_cmp_lt_u32 s2, 240\ns_cbranch_scc0 L_final")

    a(f"""
    s_lshl_b32 s68, s64, 3
    s_add_u32 s68, s68, s3
    s_mul_i32 s69, s68, 171
    s_lshr_b32 s69, s69, 10
    s_mul_i32 s70, s69, 6
    s_sub_u32 s70, s68, s70
    s_lshl_b32 s70, s70, 8
    s_mul_i32 s69, s69, {REC}
    s_add_u32 s70, s70, s69
    """)
    a(f"v_mul_u32_u24 v12, {32*REC}, v3\nv_lshl_add_u32 v13, v2, 5, v12")
    def oloads():
        a("buffer_load_dwordx4 v[64:67], v13, s[48:51], s70 offen sc1")
        a("buffer_load_dwordx4 v[68:71], v13, s[48:51], s70 offen offset:16 sc1")
        a(f"buffer_load_dwordx4 v[72:75], v12, s[48:51], s69 offen offset:{ML_OFF} sc1")
    poll("L_opoll", oloads, [65, 67, 69, 71, 73, 75], 76)
    stamp(8)
    a("v_max_f32_dpp v54, v72, v72 quad_perm:[1,0,3,2] row_mask:0xf bank_mask:0xf")
    a("v_max_f32_dpp v54, v54, v54 quad_perm:[2,3,0,1] row_mask:0xf bank_mask:0xf")
    a("v_max_f32_dpp v54, v54, v54 row_half_mirror row_mask:0xf bank_mask:0xf")
    a("v_sub_f32 v52, v72, v54")
    a("v_exp_f32 v52, v52")
    a("v_mul_f32 v55, v52, v74")
    for r in range(4): a(f"v_mul_f32 v{44+r}, v52, v{64+2*r}")
    bfly8("v_add_f32", [55, 44, 45, 46, 47])
    a("v_rcp_f32 v55, v55")
    for r in range(4): a(f"v_mov_b32 v{32+r}, 0")
    for r in range(4): a(f"v_mul_f32 v{44+r}, v55, v{44+r}")
    for i in range(4): mkA(80 + 4*i, 44 + i, 56 + i)
    for i in range(4):
        a(f"v_mfma_f32_16x16x32_bf16 v[32:35], v[{80+4*i}:{83+4*i}], v[{16+4*i}:{19+4*i}], v[32:35]")
    a(f"s_mul_i32 s68, s3, {SSTR}")
    a("v_add_u32 v12, s68, v5")
    evenodd(48, 32)
    a(f"ds_write_b32 v12, v48 offset:{L_SP}")
    a(f"v_and_b32 v56, 3, v1\nv_mul_u32_u24 v12, {SSTR}, v56\nv_lshrrev_b32 v13, 2, v1\nv_lshlrev_b32 v13, 4, v13\nv_add_u32 v12, v12, v13")
    a("v_lshlrev_b32 v13, 1, v13\nv_lshl_add_u32 v13, v56, 4, v13")
    a("v_cmp_eq_u32 s[74:75], 1, v56")
    a("s_waitcnt lgkmcnt(0)")
    a("s_barrier")
    a("s_cmp_eq_u32 s3, 0\ns_cbranch_scc0 L_done")
    a(f"ds_read_b128 v[44:47], v12 offset:{L_SP}")
    a(f"ds_read_b128 v[52:55], v12 offset:{L_SP+4*SSTR}")
    a("s_waitcnt lgkmcnt(0)")
    for r in range(4): a(f"v_add_f32 v{44+r}, v{44+r}, v{52+r}")
    for mod in ("quad_perm:[1,0,3,2]", "quad_perm:[2,3,0,1]"):
        for r in range(4): a(f"v_add_f32_dpp v{44+r}, v{44+r}, v{44+r} {mod} row_mask:0xf bank_mask:0xf")
    a("v_cndmask_b32 v48, v44, v46, s[74:75]")
    a("v_cndmask_b32 v50, v45, v47, s[74:75]")
    a("s_mov_b32 exec_lo, 0x33333333\ns_mov_b32 exec_hi, 0x33333333")
    a(f"buffer_store_dwordx4 v[48:51], v13, s[48:51], s66 offen offset:{SP_OFF} sc1")
    a("s_mov_b64 exec, -1")
    a("s_branch L_done")

    a("L_final:")
    a("s_cmp_lt_u32 s2, 250\ns_cbranch_scc0 L_done")
    a("s_cmp_lt_u32 s3, 4\ns_cbranch_scc0 L_done")
    srd(60, 24, 25, None, 1280)
    reduce24(SP_OFF, 27, "L_sppoll")
    stamp(8)
    rne(27, 27)
    a("v_mul_f32 v27, v27, v26")
    rne(27, 27)
    a("v_add_f32 v27, v27, v25")
    a("v_cvt_pk_bf16_f32 v27, v27, v27")
    a("s_mov_b32 exec_lo, 0xff\ns_mov_b32 exec_hi, 0xff")
    a("buffer_store_short v27, v22, s[60:63], 0 offen")
    a("s_cmp_eq_u32 s2, 240\ns_cbranch_scc0 L_done")
    a("s_cmp_eq_u32 s3, 0\ns_cbranch_scc0 L_done")
    a("s_mov_b64 exec, 1")
    a(f"v_mov_b32 v12, {EP_OFF}")
    a("buffer_store_dword v49, v12, s[48:51], 0 offen sc1")
    a("L_done:")
    if stamps:
        a("s_mov_b64 exec, -1")
        stamp(9)
        a("s_waitcnt lgkmcnt(0)")
        a(f"s_add_u32 s48, s28, {STAMP_OFF}\ns_addc_u32 s49, s29, 0\ns_mov_b32 s50, 0x100000\ns_mov_b32 s51, 0x20000")
        a("s_lshl_b32 s68, s2, 3\ns_add_u32 s68, s68, s3\ns_lshl_b32 s68, s68, 6")
        for i in range(10): a(f"v_mov_b32 v{64+i}, s{80+2*i}")
        a("s_getreg_b32 s69, hwreg(HW_REG_XCC_ID)")
        a("v_mov_b32 v74, s69\nv_mov_b32 v75, 0\nv_mov_b32 v12, 0")
        a("s_mov_b64 exec, 1")
        for i in range(3):
            a(f"buffer_store_dwordx4 v[{64+4*i}:{67+4*i}], v12, s[48:51], s68 offen offset:{16*i}")
    if opts.get("dbgstamps"):
        a("s_mov_b64 exec, -1")
        a("s_memrealtime s[98:99]")
        a("s_waitcnt lgkmcnt(0)")
        srd(52, 26, 27, None, 256)
        a("v_mov_b32 v12, 0")
        a("s_mov_b64 exec, 1")
        k = 0
        for n, (wg, wv, idx) in enumerate(opts["dbgstamps"]):
            a(f"s_cmp_eq_u32 s2, {wg}\ns_cbranch_scc0 L_dbg{n}")
            a(f"s_cmp_eq_u32 s3, {wv}\ns_cbranch_scc0 L_dbg{n}")
            for i in idx:
                a(f"v_mov_b32 v13, s{80+2*i}")
                a(f"buffer_store_dword v13, v12, s[52:55], 0 offen offset:{4*k}")
                k += 1
            a(f"L_dbg{n}:")
    a("L_end:")
    a("s_endpgm")
    a.raw('.section .rodata,"a"'); a.raw(".p2align 6")
    a.raw(f".amdhsa_kernel {NAME}_kernel")
    a.raw("  .amdhsa_next_free_vgpr 256\n  .amdhsa_next_free_sgpr 102\n  .amdhsa_accum_offset 256")
    a.raw("  .amdhsa_group_segment_fixed_size 0\n  .amdhsa_kernarg_size 104\n  .amdhsa_user_sgpr_count 2")
    a.raw("  .amdhsa_user_sgpr_kernarg_segment_ptr 1\n  .amdhsa_system_sgpr_workgroup_id_x 1")
    a.raw("  .amdhsa_float_denorm_mode_32 3")
    a.raw(".end_amdhsa_kernel")
    return a.text()

if __name__ == "__main__":
    open("k2.s", "w").write(gen(False))
    open("k2_st.s", "w").write(gen(True))
    open("k2_dbg.s", "w").write(gen(False, opts={"dbgstamps": [(0, 7, [0, 1, 2, 3, 7, 8, 9]), (240, 0, [0, 7, 8, 9]), (133, 0, [0, 3, 2, 6, 9])]}))
    open("k2_a.s", "w").write(gen(True, opts={"timeout": 0}))
    open("k2_b.s", "w").write(gen(True, opts={"timeout": 0, "nopub": 1}))
    open("k2_c.s", "w").write(gen(True, opts={"timeout": 0, "nopoll": 1}))
    open("k2_d.s", "w").write(gen(True, opts={"timeout": 0, "nopoll": 1, "nopub": 1}))
```
